```python
import torch

def _softmax(x, axis=-1):
    return torch.softmax(x, dim=axis)
def _gelu(x):
    return torch.nn.functional.gelu(x, approximate="tanh")
def _silu(x):
    return torch.nn.functional.silu(x)
def _sigmoid(x):
    return torch.sigmoid(x)
def _layernorm(x, axis=-1, eps=1e-5):
    m = x.mean(dim=axis, keepdim=True)
    v = x.var(dim=axis, keepdim=True, unbiased=False)
    return (x - m) / torch.sqrt(v + eps)
def _scatter_add(tgt, idx, src, axis=0):
    return tgt.clone().index_add_(axis, idx, src)
def _segment_sum(src, seg, n):
    out = torch.zeros((n,) + src.shape[1:], dtype=src.dtype)
    return out.index_add_(0, seg, src)
def _pad(x, pw):
    flat = tuple(v for pair in reversed(pw) for v in pair)
    return torch.nn.functional.pad(x, flat)

kernel_name = 'gated_mix__sliding_block_cached__dense_activation_squared_relu__decode'

def setup_inputs():

    _w = (lambda a: (lambda t: t.to(torch.bfloat16) if t.is_floating_point() else t)(torch.as_tensor(a)))
    def _A_setup():
        B, Sq, D = 2, 1, 576
        Hq, Hkv, Sk, Dh = 32, 16, 32768, 128
        assert Hq % Hkv == 0, (Hq, Hkv)
        return {
            "x": _w((lambda *s: torch.randn(*s, dtype=torch.bfloat16) * 0.05)(B, Sq, D)),
            "k_cache": _w((lambda *s: torch.randn(*s, dtype=torch.bfloat16) * 6.4)(B, Hkv, Sk, Dh)),
            "v_cache": _w((lambda *s: torch.randn(*s, dtype=torch.bfloat16) * 0.4)(B, Hkv, Sk, Dh)),
            "wq": _w((lambda *s: torch.randn(*s, dtype=torch.bfloat16) * 6.4)(D, Hq * Dh) * (D ** -0.5)),
            "wo": _w((lambda *s: torch.randn(*s, dtype=torch.bfloat16) * 0.4)(Hq * Dh, D) * ((Hq * Dh) ** -0.5)),
        }
    _A_in = _A_setup()

    def _B_setup():
        B, S, D, F = 2, 1, 576, 4608
        return {
            "x": _w((lambda *s: torch.randn(*s, dtype=torch.bfloat16) * 0.05)(B, S, D)),
            "w1": _w((lambda *s: torch.randn(*s, dtype=torch.bfloat16) * 0.05)(D, F)),
            "b1": _w((lambda *s: torch.randn(*s, dtype=torch.bfloat16) * 0.05)(F)),
            "w2": _w((lambda *s: torch.randn(*s, dtype=torch.bfloat16) * 0.05)(F, D)),
            "b2": _w((lambda *s: torch.randn(*s, dtype=torch.bfloat16) * 0.05)(D)),
        }
    _B_in = _B_setup()

    return {
        "A_x": _A_in["x"],
        "A_k_cache": _A_in["k_cache"],
        "A_v_cache": _A_in["v_cache"],
        "A_wq": _A_in["wq"],
        "A_wo": _A_in["wo"],
        "B_x": _B_in["x"],
        "B_w1": _B_in["w1"],
        "B_b1": _B_in["b1"],
        "B_w2": _B_in["w2"],
        "B_b2": _B_in["b2"],
        "gate_w": _w((lambda *s: torch.randn(*s, dtype=torch.bfloat16) * 0.05)(576) * 16.0),
    }

def reference(A_x, A_k_cache, A_v_cache, A_wq, A_wo, B_x, B_w1, B_b1, B_w2, B_b2, gate_w):
    def _A_ref(x, k_cache, v_cache, wq, wo):
        B, Sq, D = x.shape
        Hq, Dh = 32, 128
        Hkv, Sk = k_cache.shape[1], k_cache.shape[2]
        W = min(4096, max(256, Sk // 4))
        rep = Hq // Hkv
        q = (lambda x, *d: x.permute(*d))((x @ wq).reshape(B, Sq, Hq, Dh), 0, 2, 1, 3)
        k = (lambda x, n, axis: torch.repeat_interleave(x, n, dim=axis))(k_cache[:, :, Sk - W:, :], rep, axis=1)
        v = (lambda x, n, axis: torch.repeat_interleave(x, n, dim=axis))(v_cache[:, :, Sk - W:, :], rep, axis=1)
        scores = torch.einsum("bhqd,bhkd->bhqk", q, k) * (Dh ** -0.5)
        p = _softmax(scores, axis=-1)
        o = torch.einsum("bhqk,bhkd->bhqd", p, v)
        return (lambda x, *d: x.permute(*d))(o, 0, 2, 1, 3).reshape(B, Sq, Hq * Dh) @ wo

    def _B_ref(x, w1, b1, w2, b2):
        h = torch.einsum("bsd,df->bsf", x, w1) + b1
        zero = torch.zeros_like(h)
        r = torch.where(h > zero, h, zero)
        h = r * r
        out = torch.einsum("bsf,fd->bsd", h, w2) + b2
        return out

    x = A_x
    g = _sigmoid((x * gate_w).sum(-1, keepdims=True))
    a = _A_ref(x, A_k_cache, A_v_cache, A_wq, A_wo)
    b = _B_ref(x, B_w1, B_b1, B_w2, B_b2)
    return g * a + (1 - g) * b
```

```python
NAME = "gated_mix__sliding_block_cached__dense_activation_squared_relu__decode"
HEADER = open("cdna_kernels/%s.s.ref" % NAME).read().split("; Override launch geometry")[0]

class Asm:
    def __init__(self):
        self.lines = []
        self.nlab = 0
    def __call__(self, s):
        for l in s.strip("\n").split("\n"):
            self.lines.append("    " + l.strip())
    def label(self, name):
        self.lines.append(name + ":")
    def newlabel(self, p="L"):
        self.nlab += 1
        return "%s_%d" % (p, self.nlab)
    def text(self):
        return "\n".join(self.lines) + "\n"

def wrap(body, grid, block, lds, nvgpr, nsgpr=102, accum=None):
    if accum is None:
        accum = (nvgpr + 3) // 4 * 4
    k = NAME + "_kernel"
    return (HEADER +
        "; @launch grid=(%d,1,1) block=(%d,1,1) lds=%d\n" % (grid, block, lds) +
        '.amdgcn_target "amdgcn-amd-amdhsa--gfx950"\n.text\n.globl %s\n.p2align 8\n.type %s,@function\n%s:\n' % (k, k, k) +
        body +
        '.section .rodata,"a"\n.p2align 6\n.amdhsa_kernel %s\n' % k +
        "  .amdhsa_next_free_vgpr %d\n  .amdhsa_next_free_sgpr %d\n  .amdhsa_accum_offset %d\n" % (nvgpr, nsgpr, accum) +
        "  .amdhsa_group_segment_fixed_size 0\n  .amdhsa_kernarg_size 112\n  .amdhsa_user_sgpr_count 2\n"
        "  .amdhsa_user_sgpr_kernarg_segment_ptr 1\n  .amdhsa_system_sgpr_workgroup_id_x 1\n.end_amdhsa_kernel\n")
```

```python
import sys, struct
from common import *

WS_EPOCH = 0
WS_MLX = 0x10000
WS_OX = 0x20000
WS_QX = 0x80000
WS_FIN = 0x100000
WS_STAMP = (1 << 27) * 4
L_K = 0
L_B = 131072
L_FLAGS = L_B
F_CNTH, F_Q, F_CNT2, F_CNT3, F_O, F_CNT4, F_H = 0, 4, 8, 12, 16, 20, 24
L_VAL = L_B + 128
L_G = L_B + 512
L_F = L_B + 576
L_ML = L_B + 640
L_Q = L_B + 1024
L_HP = L_B + 1536
L_OP = L_B + 2048
LDS_BYTES = L_OP + 8192
CSCALE = 0.08838834764831845 * 1.4426950408889634
def f32(x): return struct.unpack("<I", struct.pack("<f", x))[0]

def gen(nt=True, ntq=True, nt1=True, ntw=True, stamps=False, spinmax=1 << 18, dbgst=False, wpos="pv", wprio=0, fgroups=4):
    if dbgst: stamps = True
    a = Asm()
    NT = " nt" if nt else ""
    NTQ = " nt" if ntq else ""
    NT1 = " nt" if nt1 else ""
    NTW = " nt" if ntw else ""
    sK, sV, sWQ, sW1, sWO, sW2, sWS, sX = "s[32:35]", "s[36:39]", "s[40:43]", "s[44:47]", "s[48:51]", "s[52:55]", "s[56:59]", "s[60:63]"
    sB1, sB2, sGW, sOUT = "s[64:67]", "s[68:71]", "s[72:75]", "s[76:79]"
    SIG = "s80"; WB = "s81"
    SELLO, SELHI = "s82", "s83"
    T0, T1, T2, T3 = "s84", "s85", "s86", "s87"
    SPIN = "s88"; CS = "s89"; BH, SPL = "s90", "s91"
    TAGW = "s92"; PEND = "s93"; EPO = "s94"; SB0, SB1 = "s95", "s96"; AW = "s97"
    T4 = "s14"; T5 = "s15"
    vST = 167
    def stamp(idx):
        if not stamps: return
        a("s_memrealtime s[100:101]\ns_waitcnt lgkmcnt(0)")
        a("v_writelane_b32 v%d, s100, %d\nv_writelane_b32 v%d, s101, %d" % (vST, 2 * idx, vST, 2 * idx + 1))
    vL = 1; vFL = 2; vONE = 3
    vM = 4; vKD = 8; vKR = 12; vVO = 16; vQR = 17
    vT = 18
    vACC = 28
    vV = 32
    vS = 96; vQ = 112; vKS = 128; vA2 = 144; vX = 164
    vG, vN = vT + 4, vT + 5

    def spin_lds(off, target, sleep=True):
        L = a.newlabel("L_spin"); D = a.newlabel("L_spd")
        a("s_mov_b32 %s, 0" % SPIN)
        a.label(L)
        a("ds_read_b32 v%d, v%d offset:%d" % (vT + 9, vFL, off))
        a("s_add_u32 %s, %s, 1" % (SPIN, SPIN))
        a("s_waitcnt lgkmcnt(0)")
        a("v_readfirstlane_b32 %s, v%d" % (T3, vT + 9))
        a("s_cmp_ge_u32 %s, %d" % (T3, target))
        a("s_cbranch_scc1 %s" % D)
        if sleep: a("s_sleep 1")
        a("s_cmp_lt_u32 %s, %d" % (SPIN, spinmax))
        a("s_cbranch_scc1 %s" % L)
        a.label(D)
    def bump(off):
        a("s_mov_b64 exec, 1")
        a("ds_add_u32 v%d, v%d offset:%d" % (vFL, vONE, off))
        a("s_mov_b64 exec, -1")
    def srd(s, lo, n):
        b = int(s[2:s.index(":")])
        a("s_mov_b32 s%d, s%d\ns_mov_b32 s%d, s%d\ns_mov_b32 s%d, 0x%x\ns_mov_b32 s%d, 0x20000" % (b, lo, b + 1, lo + 1, b + 2, n, b + 3))
    def rnd_bf16(r):
        a("v_cvt_pk_bf16_f32 v%d, v%d, v%d\nv_and_b32 v%d, 0xffff0000, v%d" % (r, r, r, r, r))

    a("s_cmp_ge_u32 s2, 256\ns_cbranch_scc1 L_end")
    a("s_load_dwordx16 s[4:19], s[0:1], 0")
    a("s_load_dwordx8 s[20:27], s[0:1], 64")
    a("s_load_dwordx4 s[28:31], s[0:1], 96")
    a("s_setprio 3")
    a("v_lshrrev_b32 v%d, 6, v0" % vT)
    a("v_and_b32 v%d, 63, v0" % vL)
    a("v_readfirstlane_b32 s3, v%d" % vT)
    if stamps:
        a("v_mov_b32 v%d, 0" % vST)
        a("s_memrealtime s[98:99]")
    a("s_and_b32 %s, s2, 7\ns_lshr_b32 %s, s2, 3\ns_lshl_b32 %s, %s, 5\ns_add_u32 %s, %s, %s" % (SPL, BH, SIG, SPL, SIG, SIG, BH))
    a("s_mov_b32 %s, 0x05040100\ns_mov_b32 %s, 0x07060302" % (SELLO, SELHI))
    a("s_mov_b32 %s, 0x%08x" % (CS, f32(CSCALE)))
    a("v_mov_b32 v%d, %d\nv_mov_b32 v%d, 1" % (vFL, L_FLAGS, vONE))
    a("v_lshrrev_b32 v%d, 4, v%d\nv_and_b32 v%d, 15, v%d" % (vG, vL, vN, vL))
    a("v_lshlrev_b32 v%d, 4, v%d" % (vVO, vL))
    a("s_cmp_ge_u32 s3, 4\ns_cbranch_scc1 L_apro")
    a("s_cmp_ge_u32 s3, 1\ns_cbranch_scc1 L_epro")

    cA = vV
    cXD = 104
    cSE = 116
    cAO = 124
    cE = 140
    cD = vACC
    c0, c1, c2, c3 = vT + 6, vT + 7, vT + 8, vT + 9
    a("v_mul_u32_u24 v%d, %d, v%d\nv_lshl_add_u32 v%d, v%d, 4, v%d" % (c0, 18 * 8192, vG, c0, vN, c0))
    a("v_lshrrev_b32 v%d, 3, v%d\nv_mul_u32_u24 v%d, 1152, v%d\nv_mul_u32_u24 v%d, 36, v%d\nv_add_u32 v%d, v%d, v%d" % (c1, vN, c1, c1, c2, vG, c1, c1, c2))
    a("v_mov_b32 v%d, 0" % c3)
    a("s_mul_i32 %s, %s, 144" % (T0, SPL))
    a("s_mul_i32 %s, %s, %d\ns_lshl_b32 %s, %s, 8\ns_add_u32 %s, %s, %s" % (T1, SPL, 72 * 8192, T2, BH, T1, T1, T2))
    a("s_waitcnt lgkmcnt(0)")
    srd(sX, 4, 2304); srd(sWQ, 10, 576 * 4096 * 2); srd(sWS, 30, 0x40000000)
    for i in range(3):
        a("buffer_load_dwordx3 v[%d:%d], v%d, %s, %s offen offset:%d" % (cXD + 4 * i, cXD + 4 * i + 2, c1, sX, T0, 12 * i))
    a("buffer_load_dword v%d, v%d, %s, 0 offen offset:%d sc1" % (cE, c3, sWS, WS_EPOCH))
    for i in range(18):
        a("buffer_load_dwordx4 v[%d:%d], v%d, %s, %s offen%s" % (cA + 4 * i, cA + 4 * i + 3, c0, sWQ, T1, NTQ))
        if i < 17: a("s_add_u32 %s, %s, 8192" % (T1, T1))
    a("s_barrier")
    srd(sB2, 22, 1152); srd(sOUT, 26, 2304)
    if stamps: a("v_writelane_b32 v%d, s98, 0\nv_writelane_b32 v%d, s99, 1" % (vST, vST))
    a("v_and_b32 v%d, 1, v%d\nv_cmp_eq_u32 vcc, 1, v%d" % (c0, vN, c0))
    a("v_mov_b32 v%d, 0x0c0c0100\nv_mov_b32 v%d, 0x01000c0c\nv_cndmask_b32 v%d, v%d, v%d, vcc" % (c1, c2, c1, c1, c2))
    a("v_mov_b32 v%d, 0x0c0c0302\nv_mov_b32 v%d, 0x03020c0c\nv_cndmask_b32 v%d, v%d, v%d, vcc" % (c2, c3, c2, c2, c3))
    a("v_bfe_u32 v%d, v%d, 1, 2\nv_mov_b32 v%d, 0x0c0c0c0c" % (c0, vN, c3))
    for d in range(4):
        a("v_cmp_eq_u32 vcc, %d, v%d\ns_nop 1" % (d, c0))
        a("v_cndmask_b32 v%d, v%d, v%d, vcc\nv_cndmask_b32 v%d, v%d, v%d, vcc" % (cSE + d, c3, c1, cSE + 4 + d, c3, c2))
    a("s_mov_b32 %s, 0x0c0c0400\ns_mov_b32 %s, 0x04000c0c" % (SB0, SB1))
    a("s_lshl_b32 %s, s2, 10\ns_add_u32 %s, %s, 0x%x" % (T0, T0, T0, WS_QX))
    a("s_waitcnt vmcnt(18)")
    a("v_readfirstlane_b32 %s, v%d\ns_nop 0" % (EPO, cE))
    a("s_and_b32 %s, %s, 0xff" % (TAGW, EPO))
    for k, c in ((8, 0x35), (16, 0x6b), (24, 0xa1)):
        a("s_add_u32 %s, %s, 0x%x\ns_and_b32 %s, %s, 0xff\ns_lshl_b32 %s, %s, %d\ns_or_b32 %s, %s, %s" % (T1, EPO, c, T1, T1, T1, T1, k, TAGW, TAGW, T1))
    TAGV = vKR + 1
    a("v_mov_b32 v%d, %s" % (TAGV, TAGW))
    a("v_add_u32 v%d, %d, v%d" % (c0, L_G + 8, vVO))
    a("s_mov_b64 exec, 3\nds_write_b32 v%d, v%d" % (c0, TAGV))
    bump(F_H)
    for i in range(18):
        A = cAO + 4 * (i & 3)
        xd = cXD + 4 * ((i >> 1) // 3) + (i >> 1) % 3
        for d in range(4): a("v_perm_b32 v%d, v%d, v%d, v%d" % (A + d, xd, xd, cSE + 4 * (i & 1) + d))
        a("s_waitcnt vmcnt(%d)\ns_nop 0" % (17 - i))
        r = cA + 4 * i
        a("v_mfma_f32_16x16x32_bf16 v[%d:%d], v[%d:%d], v[%d:%d], %s" % (cD, cD + 3, A, A + 3, r, r + 3, "0" if i == 0 else "v[%d:%d]" % (cD, cD + 3)))
    stamp(1)
    QV = vKR
    a("v_lshrrev_b32 v%d, 5, v%d\nv_lshlrev_b32 v%d, 13, v%d\nv_and_b32 v%d, 31, v%d\nv_lshl_add_u32 v%d, v%d, 4, v%d" % (c0, vL, c0, c0, c1, vL, QV, c1, c0))
    a("s_and_b32 %s, %s, 15\ns_lshl_b32 %s, %s, 14\ns_lshr_b32 %s, %s, 4\ns_lshl_b32 %s, %s, 9\ns_add_u32 %s, %s, %s\ns_add_u32 %s, %s, 0x%x\ns_add_u32 %s, %s, 4096"
      % (T2, BH, T2, T2, T1, BH, T1, T1, T2, T2, T1, T2, T2, WS_QX, T4, T2))
    def embed(r0, tagv):
        a("s_mov_b32 %s, 0x07060500" % T1)
        for r in range(4):
            a("v_perm_b32 v%d, v%d, v%d, %s" % (r0 + r, r0 + r, tagv, T1))
            if r < 3: a("s_add_u32 %s, %s, 1" % (T1, T1))
    embed(cD, TAGV)
    a("buffer_store_dwordx4 v[%d:%d], v%d, %s, %s offen sc1" % (cD, cD + 3, vVO, sWS, T0))
    stamp(2)
    def tagbad(dst, q, tmp):
        a("v_perm_b32 v%d, v%d, v%d, %s\nv_perm_b32 v%d, v%d, v%d, %s" % (dst, q + 1, q, SB0, tmp, q + 3, q + 2, SB1))
        a("v_or_b32 v%d, v%d, v%d\nv_xor_b32 v%d, v%d, v%d" % (dst, dst, tmp, dst, dst, TAGV))
    def poll(loadfn, checkfn):
        L = a.newlabel("L_poll"); D = a.newlabel("L_pld")
        a("s_mov_b32 %s, 0" % SPIN)
        a.label(L)
        loadfn()
        a("s_add_u32 %s, %s, 1" % (SPIN, SPIN))
        a("s_waitcnt vmcnt(0)")
        checkfn()
        a("s_cmp_eq_u64 vcc, 0\ns_cbranch_scc1 %s" % D)
        a("s_cmp_lt_u32 %s, %d\ns_cbranch_scc1 %s" % (SPIN, spinmax, L))
        a.label(D)
    def qload():
        for i in range(8):
            a("buffer_load_dwordx4 v[%d:%d], v%d, %s, %s offen offset:%d sc1" % (cA + 4 * i, cA + 4 * i + 3, QV, sWS, T2 if i < 4 else T4, (i & 3) * 1024))
    def multicheck(n, base):
        for i in range(n):
            tagbad(c0 if i == 0 else c2, base + 4 * i, c1)
            if i: a("v_or_b32 v%d, v%d, v%d" % (c0, c0, c2))
        a("v_cmp_ne_u32 vcc, 0, v%d" % c0)
    poll(qload, lambda: multicheck(8, cA))
    for step in (4, 2, 1):
        for i in range(step):
            for r in range(4): a("v_add_f32 v%d, v%d, v%d" % (cA + 4 * i + r, cA + 4 * i + r, cA + 4 * (i + step) + r))
    a("v_cvt_pk_bf16_f32 v%d, v%d, v%d\nv_cvt_pk_bf16_f32 v%d, v%d, v%d" % (cA, cA, cA + 1, cA + 1, cA + 2, cA + 3))
    a("v_lshrrev_b32 v%d, 5, v%d\nv_lshlrev_b32 v%d, 8, v%d\nv_lshl_add_u32 v%d, v%d, 4, v%d" % (c0, vL, c0, c0, c0, vN, c0))
    a("v_and_b32 v%d, 1, v%d\nv_lshl_add_u32 v%d, v%d, 3, v%d\nv_add_u32 v%d, %d, v%d" % (c1, vG, c0, c1, c0, c0, L_Q, c0))
    a("ds_write_b64 v%d, v[%d:%d]" % (c0, cA, cA + 1))
    bump(F_Q)
    stamp(3)
    OV = vKR + 2
    MV = vKR + 3
    a("v_lshrrev_b32 v%d, 2, v%d\nv_lshlrev_b32 v%d, 4, v%d\nv_lshlrev_b32 v%d, 10, v%d\nv_and_b32 v%d, 3, v%d\nv_lshl_add_u32 v%d, v%d, 4, v%d" % (c0, vL, MV, c0, c0, c0, c1, vL, OV, c1, c0))
    a("s_lshr_b32 %s, %s, 4\ns_lshl_b32 %s, %s, 3\ns_add_u32 %s, %s, %s" % (T5, BH, T5, T5, T5, T5, SPL))
    a("s_lshl_b32 %s, s2, 2" % T0)
    a("v_and_b32 v%d, 3, v%d\nv_add_u32 v%d, %s, v%d" % (c0, vL, c0, T0, c0))
    a("v_bfe_u32 v%d, v%d, 5, 1" % (c1, c0))
    a("v_lshrrev_b32 v%d, 6, v%d\nv_lshlrev_b32 v%d, 7, v%d" % (c2, c0, c2, c2))
    a("v_and_b32 v%d, 15, v%d\nv_lshl_add_u32 v%d, v%d, 3, v%d" % (c3, c0, c2, c3, c2))
    a("v_bfe_u32 v%d, v%d, 4, 1\nv_lshl_add_u32 v%d, v%d, 2, v%d" % (c3, c0, c2, c3, c2))
    a("s_cmp_lt_u32 s2, 64\ns_cbranch_scc1 L_fmap")
    a("v_bfe_u32 v%d, v%d, 4, 1" % (c1, c0))
    a("v_and_b32 v%d, 15, v%d\nv_lshlrev_b32 v%d, 2, v%d\nv_add_u32 v%d, 512, v%d" % (c2, c0, c2, c2, c2, c2))
    a.label("L_fmap")
    FB2 = vKD; FOUT = vKD + 2; FGA = vKD + 3
    a("v_lshlrev_b32 v%d, 1, v%d" % (c2, c2))
    a("buffer_load_dwordx2 v[%d:%d], v%d, %s, 0 offen" % (FB2, FB2 + 1, c2, sB2))
    a("v_mul_u32_u24 v%d, 1152, v%d\nv_add_u32 v%d, v%d, v%d" % (FOUT, c1, FOUT, FOUT, c2))
    a("v_lshlrev_b32 v%d, 4, v%d\nv_add_u32 v%d, %d, v%d" % (c1, c1, FGA, L_G, c1))
    VW = vM
    a("v_lshrrev_b32 v%d, 5, v%d\nv_mul_u32_u24 v%d, 192, v%d\nv_and_b32 v%d, 3, v%d\nv_lshl_add_u32 v%d, v%d, 2, v%d\nv_add_u32 v%d, %d, v%d" % (c0, vL, c0, c0, c1, vL, c0, c1, c0, VW, L_VAL, c0))
    spin_lds(F_CNT2, 8)
    stamp(4)
    MW, LW = 104, 105
    PM = 108
    a("v_lshlrev_b32 v%d, 3, v%d\nv_add_u32 v%d, %d, v%d" % (c0, vN, c0, L_ML, c0))
    a("ds_read_b64 v[%d:%d], v%d" % (MW, LW, c0))
    a("s_waitcnt lgkmcnt(0)")
    a("v_mov_b32 v%d, v%d" % (PM, MW))
    for rot in (2, 4, 8):
        a("s_nop 1\nv_max_f32_dpp v%d, v%d, v%d row_ror:%d row_mask:0xf bank_mask:0xf" % (PM, PM, PM, rot))
    a("v_sub_f32 v%d, v%d, v%d\nv_mul_f32 v%d, %s, v%d\nv_exp_f32 v%d, v%d\ns_nop 0\nv_mul_f32 v%d, v%d, v%d" % (c1, MW, PM, c1, CS, c1, c1, c1, PM + 1, c1, LW))
    for rot in (2, 4, 8):
        a("s_nop 1\nv_add_f32_dpp v%d, v%d, v%d row_ror:%d row_mask:0xf bank_mask:0xf" % (PM + 1, PM + 1, PM + 1, rot))
    a("v_mov_b32 v%d, v%d\nv_not_b32 v%d, v%d" % (PM + 2, TAGV, PM + 3, TAGV))
    a("v_lshlrev_b32 v%d, 8, v%d" % (c0, vL))
    a("s_and_b32 %s, %s, 15\ns_lshl_b32 %s, %s, 9\ns_lshl_b32 %s, %s, 4\ns_add_u32 %s, %s, %s\ns_add_u32 %s, %s, 0x%x" % (T0, BH, T0, T0, T1, T5, T0, T0, T1, T0, T0, WS_MLX))
    a("s_mov_b64 exec, 3")
    a("buffer_store_dwordx4 v[%d:%d], v%d, %s, %s offen sc1" % (PM, PM + 3, c0, sWS, T0))
    a("s_mov_b64 exec, 0xffff")
    a("v_and_b32 v%d, 1, v%d\nv_lshlrev_b32 v%d, 5, v%d\nv_and_b32 v%d, 14, v%d\nv_lshl_add_u32 v%d, v%d, 1, v%d\nv_add_u32 v%d, %d, v%d" % (c0, vL, c0, c0, c2, vL, c0, c2, c0, c0, L_F, c0))
    a("ds_write_b32 v%d, v%d" % (c0, c1))
    a("s_mov_b64 exec, -1")
    FW = 112
    a("v_lshrrev_b32 v%d, 5, v%d\nv_lshlrev_b32 v%d, 5, v%d\nv_add_u32 v%d, %d, v%d" % (c0, vL, c0, c0, c0, L_F, c0))
    a("ds_read_b128 v[%d:%d], v%d\nds_read_b128 v[%d:%d], v%d offset:16" % (FW, FW + 3, c0, FW + 4, FW + 7, c0))
    a("v_add_u32 v%d, %d, v%d" % (c2, L_OP, vVO))
    a("s_and_b32 %s, %s, 15\ns_lshl_b32 %s, %s, 14\ns_lshl_b32 %s, %s, 6\ns_add_u32 %s, %s, %s\ns_add_u32 %s, %s, 0x%x" % (T0, BH, T0, T0, T1, T5, T0, T0, T1, T0, T0, WS_OX))
    a("s_lshl_b32 %s, %s, 10\ns_add_u32 %s, %s, 0x%x" % (T2, SIG, T2, T2, WS_OX))
    a("s_lshr_b32 %s, %s, 3\ns_lshl_b32 %s, %s, 8\ns_add_u32 %s, %s, 0x%x" % (T4, SIG, T4, T4, T4, T4, WS_MLX))
    stamp(5)
    spin_lds(F_CNT3, 8, sleep=False)
    stamp(6)
    for w in range(8): a("ds_read_b128 v[%d:%d], v%d offset:%d" % (cA + 4 * w, cA + 4 * w + 3, c2, w * 1024))
    O = 120
    for w in range(8):
        a("s_waitcnt lgkmcnt(%d)" % (7 - w))
        for r in range(4):
            if w == 0: a("v_mul_f32 v%d, v%d, v%d" % (O + r, cA + r, FW))
            else: a("v_fmac_f32 v%d, v%d, v%d" % (O + r, cA + 4 * w + r, FW + w))
    embed(O, TAGV)
    a("buffer_store_dwordx4 v[%d:%d], v%d, %s, %s offen sc1" % (O, O + 3, OV, sWS, T0))
    stamp(7)
    GO = 124; GM = 132
    def oload():
        a("buffer_load_dwordx4 v[%d:%d], v%d, %s, %s offen sc1" % (GM, GM + 3, MV, sWS, T4))
        a("buffer_load_dwordx4 v[%d:%d], v%d, %s, %s offen sc1" % (GO, GO + 3, vVO, sWS, T2))
    def ocheck():
        tagbad(c0, GO, c1)
        a("v_xor_b32 v%d, v%d, v%d\nv_xor_b32 v%d, v%d, v%d\nv_or3_b32 v%d, v%d, v%d, v%d\nv_cmp_ne_u32 vcc, 0, v%d" % (c1, GM + 2, PM + 2, c2, GM + 3, PM + 3, c0, c0, c1, c2, c0))
    poll(oload, ocheck)
    stamp(8)
    a("v_max_f32_dpp v%d, v%d, v%d row_ror:4 row_mask:0xf bank_mask:0xf\ns_nop 1" % (c0, GM, GM))
    a("v_max_f32_dpp v%d, v%d, v%d row_ror:8 row_mask:0xf bank_mask:0xf" % (c0, c0, c0))
    a("v_mov_b32 v%d, v%d\ns_nop 1\nv_permlane16_swap_b32 v%d, v%d\nv_max_f32 v%d, v%d, v%d" % (c1, c0, c0, c1, c0, c0, c1))
    a("v_sub_f32 v%d, v%d, v%d\nv_mul_f32 v%d, %s, v%d\nv_exp_f32 v%d, v%d\ns_nop 0" % (c0, GM, c0, c0, CS, c0, c0, c0))
    R5 = [GO, GO + 1, GO + 2, GO + 3, GM + 1]
    for r in R5: a("v_mul_f32 v%d, v%d, v%d" % (r, r, c0))
    a("s_nop 0")
    for rot in (4, 8):
        for r in R5: a("v_add_f32_dpp v%d, v%d, v%d row_ror:%d row_mask:0xf bank_mask:0xf" % (r, r, r, rot))
    C5 = [GO + 4, GO + 5, GO + 6, GO + 7, GM]
    for r, t in zip(R5, C5): a("v_mov_b32 v%d, v%d" % (t, r))
    a("s_nop 0")
    for r, t in zip(R5, C5): a("v_permlane16_swap_b32 v%d, v%d" % (r, t))
    for r, t in reversed(list(zip(R5, C5))): a("v_add_f32 v%d, v%d, v%d" % (r, r, t))
    a("v_rcp_f32 v%d, v%d\ns_nop 0" % (GM + 1, GM + 1))
    for r in range(4): a("v_mul_f32 v%d, v%d, v%d" % (GO + r, GO + r, GM + 1))
    for r in range(4): a("v_cvt_pk_bf16_f32 v%d, v%d, v%d" % (GO + r, GO + r, GO + r))
    a("s_mov_b32 exec_lo, 0xf\ns_mov_b32 exec_hi, 0xf")
    for r in range(4): a("ds_write_b32 v%d, v%d offset:%d" % (VW, GO + r, 48 * r))
    bump(F_O)
    stamp(9)
    a("s_cmp_ge_u32 s2, 72\ns_cbranch_scc1 L_adone")
    FG = 104
    a("ds_read_b128 v[%d:%d], v%d" % (FG, FG + 3, FGA))
    a("s_lshl_b32 %s, s2, 14\ns_add_u32 %s, %s, 0x%x" % (T2, T2, T2, WS_FIN))
    ACC = 108
    for r in range(4): a("v_mov_b32 v%d, 0" % (ACC + r))
    NG = fgroups; PG = 16 // NG
    a("s_mov_b32 %s, %d" % (PEND, (1 << NG) - 1))
    spin_lds(F_CNT4, 5, sleep=False)
    stamp(10)
    a("s_mov_b32 %s, 0" % SPIN)
    a.label("L_fin")
    for gi in range(NG):
        S = a.newlabel("L_fs")
        a("s_bitcmp1_b32 %s, %d\ns_cbranch_scc0 %s" % (PEND, gi, S))
        for k in range(PG):
            i = gi * PG + k
            if k == 0 or i % 4 == 0: a("s_add_u32 %s, %s, %d" % (T0, T2, (i // 4) * 4096))
            a("buffer_load_dwordx4 v[%d:%d], v%d, %s, %s offen offset:%d sc1" % (cA + 4 * i, cA + 4 * i + 3, vVO, sWS, T0, (i % 4) * 1024))
        a.label(S)
    a("s_add_u32 %s, %s, 1" % (SPIN, SPIN))
    a("s_waitcnt vmcnt(0)")
    for gi in range(NG):
        S = a.newlabel("L_fc")
        a("s_bitcmp1_b32 %s, %d\ns_cbranch_scc0 %s" % (PEND, gi, S))
        multicheck(PG, cA + 4 * gi * PG)
        a("s_cmp_eq_u64 vcc, 0\ns_cbranch_scc0 %s" % S)
        a("s_bitset0_b32 %s, %d" % (PEND, gi))
        for k in range(PG):
            for r in range(4): a("v_add_f32 v%d, v%d, v%d" % (ACC + r, ACC + r, cA + 4 * (gi * PG + k) + r))
        a.label(S)
    a("s_cmp_eq_u32 %s, 0\ns_cbranch_scc1 L_find" % PEND)
    a("s_cmp_lt_u32 %s, %d\ns_cbranch_scc1 L_fin" % (SPIN, spinmax))
    a.label("L_find")
    stamp(11)
    a("v_lshlrev_b32 v%d, 16, v%d\nv_and_b32 v%d, 0xffff0000, v%d\nv_lshlrev_b32 v%d, 16, v%d\nv_and_b32 v%d, 0xffff0000, v%d" % (cA + 8, FB2, cA + 9, FB2, cA + 10, FB2 + 1, cA + 11, FB2 + 1))
    for rot in (4, 8):
        for r in range(4): a("v_add_f32_dpp v%d, v%d, v%d row_ror:%d row_mask:0xf bank_mask:0xf" % (ACC + r, ACC + r, ACC + r, rot))
    for sw in ("v_permlane16_swap_b32", "v_permlane32_swap_b32"):
        for r in range(4): a("v_mov_b32 v%d, v%d" % (cA + 4 + r, ACC + r))
        a("s_nop 1")
        for r in range(4): a("%s v%d, v%d" % (sw, ACC + r, cA + 4 + r))
        for r in range(4): a("v_add_f32 v%d, v%d, v%d" % (ACC + r, ACC + r, cA + 4 + r))
    for r in range(4): a("v_fmac_f32 v%d, v%d, v%d" % (ACC + r, cA + 8 + r, FG + 1))
    a("v_cvt_pk_bf16_f32 v%d, v%d, v%d\nv_cvt_pk_bf16_f32 v%d, v%d, v%d" % (ACC, ACC, ACC + 1, ACC + 1, ACC + 2, ACC + 3))
    a("s_mov_b64 exec, 0xf")
    a("buffer_store_dwordx2 v[%d:%d], v%d, %s, 0 offen" % (ACC, ACC + 1, FOUT, sOUT))
    a("s_mov_b64 exec, -1")
    a("s_cmp_lg_u32 s2, 0\ns_cbranch_scc1 L_adone")
    a("s_add_u32 %s, %s, 1\nv_mov_b32 v%d, %s\nv_mov_b32 v%d, 0" % (T0, EPO, c0, T0, c1))
    a("s_mov_b64 exec, 1")
    a("buffer_store_dword v%d, v%d, %s, 0 offen offset:%d sc1" % (c0, c1, sWS, WS_EPOCH))
    a("s_mov_b64 exec, -1")
    a("s_branch L_adone")

    a.label("L_epro")
    eW = vV
    eX = 80
    eA = 96
    eXG = 112; eGG = 124; eB1 = 136
    EW = AW
    a("s_sub_u32 %s, s3, 1" % EW)
    a("v_lshrrev_b32 v%d, 2, v%d\nv_mul_u32_u24 v%d, 24, v%d\nv_mul_u32_u24 v%d, %d, v%d" % (c2, vL, c1, c2, c0, 12 * 9216, c2))
    a("v_and_b32 v%d, 3, v%d\nv_cmp_eq_u32 vcc, 3, v%d\nv_mul_u32_u24 v%d, 12, v%d\nv_add_u32 v%d, v%d, v%d" % (c2, vL, c2, c2, c2, c0, c0, c2))
    a("v_mov_b32 v%d, 0x40000000\nv_cndmask_b32 v%d, v%d, v%d, vcc" % (c2, c0, c0, c2))
    a("s_mul_i32 %s, %s, 384" % (T0, EW))
    a("s_mul_i32 %s, %s, %d\ns_mul_i32 %s, %s, 36\ns_add_u32 %s, %s, %s" % (T1, EW, 192 * 9216, T2, SIG, T1, T1, T2))
    a("s_waitcnt lgkmcnt(0)")
    srd(sX, 4, 2304); srd(sW1, 16, 576 * 4608 * 2)
    for i, o in enumerate((0, 12, 1152, 1164)):
        a("buffer_load_dwordx3 v[%d:%d], v%d, %s, %s offen offset:%d" % (eX + 4 * i, eX + 4 * i + 2, c1, sX, T0, o))
    for k in range(12):
        a("buffer_load_dwordx3 v[%d:%d], v%d, %s, %s offen%s" % (eW + 4 * k, eW + 4 * k + 2, c0, sW1, T1, NT1))
        if k < 11: a("s_add_u32 %s, %s, 9216" % (T1, T1))
    srd(sB1, 18, 4608 * 2); srd(sGW, 24, 1152); srd(sWS, 30, 0x40000000)
    a("v_cmp_le_u32 vcc, 18, v%d\nv_subrev_u32 v%d, 18, v%d\ns_nop 0\nv_cndmask_b32 v%d, v%d, v%d, vcc" % (vL, c1, vL, vX, vL, c1))
    a("v_lshlrev_b32 v%d, 1, v%d" % (c1, vX))
    a("buffer_load_ushort v%d, v%d, %s, %s offen" % (eB1, c1, sB1, T2))
    a("v_and_b32 v%d, 31, v%d\nv_mul_u32_u24 v%d, 36, v%d" % (c1, vL, c1, c1))
    a("v_lshrrev_b32 v%d, 5, v%d\nv_mul_u32_u24 v%d, 1152, v%d\nv_add_u32 v%d, v%d, v%d" % (c2, vL, c2, c2, c2, c2, c1))
    a("s_cmp_lg_u32 s3, 2\ns_cbranch_scc1 L_enog")
    for i in range(3):
        a("buffer_load_dwordx3 v[%d:%d], v%d, %s, 0 offen offset:%d" % (eXG + 4 * i, eXG + 4 * i + 2, c2, sX, 12 * i))
        a("buffer_load_dwordx3 v[%d:%d], v%d, %s, 0 offen offset:%d" % (eGG + 4 * i, eGG + 4 * i + 2, c1, sGW, 12 * i))
    a.label("L_enog")
    a("s_barrier")
    if stamps: a("v_writelane_b32 v%d, s98, 0\nv_writelane_b32 v%d, s99, 1" % (vST, vST))
    HA = vKR
    a("v_lshrrev_b32 v%d, 5, v%d\nv_mul_u32_u24 v%d, 72, v%d" % (c0, vL, c0, c0))
    a("v_and_b32 v%d, 1, v%d\nv_mul_u32_u24 v%d, 12, v%d\nv_add_u32 v%d, v%d, v%d" % (c1, vG, c1, c1, c0, c0, c1))
    a("v_and_b32 v%d, 3, v%d\nv_mul_u32_u24 v%d, 24, v%d\nv_add_u32 v%d, v%d, v%d" % (c1, vL, c1, c1, c0, c0, c1))
    a("s_mul_i32 %s, %s, 144\ns_add_u32 %s, %s, %d\nv_add_u32 v%d, %s, v%d" % (T0, EW, T0, T0, L_HP, HA, T0, c0))
    a("s_waitcnt vmcnt(0)")
    stamp(1)
    P0, P1 = c0, c1
    for pr in range(6):
        for d in range(3):
            a("v_perm_b32 v%d, v%d, v%d, %s" % (P0, eW + 8 * pr + 4 + d, eW + 8 * pr + d, SELLO))
            a("v_perm_b32 v%d, v%d, v%d, %s" % (P1, eW + 8 * pr + 4 + d, eW + 8 * pr + d, SELHI))
            for b in range(2):
                xr = eX + 8 * b + 4 * (pr // 3) + pr % 3
                for h, P in ((0, P0), (1, P1)):
                    r = eA + 6 * b + 2 * d + h
                    a("v_dot2_f32_bf16 v%d, v%d, v%d, %s" % (r, P, xr, "0" if pr == 0 else "v%d" % r))
    a("s_nop 2")
    for j in range(6): a("v_permlane32_swap_b32 v%d, v%d" % (eA + j, eA + 6 + j))
    for j in range(6): a("v_add_f32 v%d, v%d, v%d" % (eA + j, eA + j, eA + 6 + j))
    a("s_nop 1")
    for j in range(3): a("v_permlane16_swap_b32 v%d, v%d" % (eA + j, eA + 3 + j))
    for j in range(3): a("v_add_f32 v%d, v%d, v%d" % (eA + j, eA + j, eA + 3 + j))
    for rot in (8, 4):
        a("s_nop 1")
        for j in range(3): a("v_add_f32_dpp v%d, v%d, v%d row_ror:%d row_mask:0xf bank_mask:0xf" % (eA + j, eA + j, eA + j, rot))
    a("s_mov_b32 exec_lo, 0x00070007\ns_mov_b32 exec_hi, 0x00070007")
    a("ds_write2_b32 v%d, v%d, v%d offset0:0 offset1:1" % (HA, eA, eA + 1))
    a("ds_write_b32 v%d, v%d offset:8" % (HA, eA + 2))
    bump(F_CNTH)
    a("s_cmp_eq_u32 s3, 3\ns_cbranch_scc1 L_adone")
    a("s_cmp_eq_u32 s3, 2\ns_cbranch_scc1 L_eg")
    spin_lds(F_CNTH, 3)
    H = eA
    a("v_min_u32 v%d, 35, v%d\nv_lshlrev_b32 v%d, 2, v%d\nv_add_u32 v%d, %d, v%d" % (c1, vL, c1, c1, c1, L_HP, c1))
    for w in range(3): a("ds_read_b32 v%d, v%d offset:%d" % (H + w, c1, w * 144))
    a("v_cmp_le_u32 vcc, 18, v%d\nv_and_b32 v%d, 3, v%d\nv_mul_u32_u24 v%d, 48, v%d" % (vL, c0, vX, c0, c0))
    a("v_and_b32 v%d, 0xfc, v%d\nv_add_u32 v%d, v%d, v%d" % (c1, vX, c0, c0, c1))
    a("v_add_u32 v%d, %d, v%d\nv_add_u32 v%d, %d, v%d\nv_cndmask_b32 v%d, v%d, v%d, vcc" % (c1, L_VAL + 16 + 192, c0, c0, L_VAL + 16, c0, c0, c0, c1))
    a("s_waitcnt lgkmcnt(0)")
    a("v_add_f32 v%d, v%d, v%d\nv_add_f32 v%d, v%d, v%d" % (H, H, H + 1, H, H, H + 2))
    rnd_bf16(H)
    a("v_lshlrev_b32 v%d, 16, v%d\nv_add_f32 v%d, v%d, v%d" % (eB1, eB1, H, H, eB1))
    rnd_bf16(H)
    a("v_max_f32 v%d, 0, v%d\nv_mul_f32 v%d, v%d, v%d\nv_cvt_pk_bf16_f32 v%d, v%d, v%d" % (H, H, H, H, H, H, H, H))
    a("s_mov_b32 exec_lo, -1\ns_mov_b32 exec_hi, 0xf")
    a("ds_write_b32 v%d, v%d" % (c0, H))
    bump(F_H)
    a("s_branch L_adone")
    a.label("L_eg")
    G = eA
    first = True
    for i in range(3):
        for d in range(3):
            xr, gr = eXG + 4 * i + d, eGG + 4 * i + d
            a("v_lshlrev_b32 v%d, 16, v%d\nv_lshlrev_b32 v%d, 16, v%d\nv_mul_f32 v%d, v%d, v%d" % (c0, xr, c1, gr, c0, c0, c1))
            a("v_and_b32 v%d, 0xffff0000, v%d\nv_and_b32 v%d, 0xffff0000, v%d\nv_mul_f32 v%d, v%d, v%d" % (c1, xr, c2, gr, c1, c1, c2))
            a("v_cvt_pk_bf16_f32 v%d, v%d, v%d" % (c0, c0, c1))
            a("v_lshlrev_b32 v%d, 16, v%d\nv_and_b32 v%d, 0xffff0000, v%d" % (c1, c0, c0, c0))
            if first: a("v_add_f32 v%d, v%d, v%d" % (G, c0, c1)); first = False
            else: a("v_add_f32 v%d, v%d, v%d\nv_add_f32 v%d, v%d, v%d" % (G, G, c0, G, G, c1))
    for rot in (8, 4, 2, 1):
        a("s_nop 1\nv_add_f32_dpp v%d, v%d, v%d row_ror:%d row_mask:0xf bank_mask:0xf" % (G, G, G, rot))
    a("v_mov_b32 v%d, v%d\ns_nop 1\nv_permlane16_swap_b32 v%d, v%d\nv_add_f32 v%d, v%d, v%d" % (c0, G, G, c0, G, G, c0))
    rnd_bf16(G)
    a("v_mul_f32 v%d, 0x%08x, v%d\nv_exp_f32 v%d, v%d\ns_nop 0\nv_add_f32 v%d, 1.0, v%d\nv_rcp_f32 v%d, v%d\ns_nop 0" % (G, f32(-1.4426950408889634), G, G, G, G, G, G, G))
    rnd_bf16(G)
    a("v_sub_f32 v%d, 1.0, v%d" % (G + 1, G))
    rnd_bf16(G + 1)
    a("v_lshrrev_b32 v%d, 1, v%d\nv_add_u32 v%d, %d, v%d" % (c0, vL, c0, L_G, c0))
    a("s_mov_b32 exec_lo, 1\ns_mov_b32 exec_hi, 1")
    a("ds_write_b64 v%d, v[%d:%d]" % (c0, G, G + 1))
    bump(F_H)
    a("s_branch L_adone")

    a.label("L_apro")
    a("s_sub_u32 %s, s3, 4\ns_lshl_b32 %s, %s, 14" % (AW, WB, AW))
    a("v_mov_b32 v%d, 0\nv_mov_b32 v%d, 0" % (vT + 6, vT + 7))
    a("v_lshlrev_b32 v%d, 3, v%d\nv_add_u32 v%d, %d, v%d" % (vT + 8, vL, vT + 8, L_FLAGS, vT + 8))
    a("s_cmp_lg_u32 s3, 4\ns_cbranch_scc1 L_anoz")
    a("ds_write_b64 v%d, v[%d:%d]" % (vT + 8, vT + 6, vT + 7))
    a.label("L_anoz")
    for i in range(4):
        a("v_lshlrev_b32 v%d, 2, v%d" % (vT + 6, vG))
        if i: a("v_add_u32 v%d, %d, v%d" % (vT + 6, i, vT + 6))
        a("v_xor_b32 v%d, v%d, v%d" % (vT + 6, vT + 6, vN))
        a("v_lshlrev_b32 v%d, 4, v%d" % (vT + 6, vT + 6))
        a("v_lshl_add_u32 v%d, v%d, 8, v%d" % (vKD + i, vG, vT + 6))
    a("v_add_u32 v%d, %s, v%d" % (vVO, WB, vVO))
    a("s_lshl_b32 %s, %s, 23\ns_lshl_b32 %s, %s, 17\ns_add_u32 %s, %s, %s\ns_add_u32 %s, %s, 0x700000" % (T0, BH, T1, SPL, T0, T0, T1, T0, T0))
    a("s_waitcnt lgkmcnt(0)")
    a("s_add_u32 s32, s6, %s\ns_addc_u32 s33, s7, 0\ns_mov_b32 s34, 0x20000\ns_mov_b32 s35, 0x20000" % T0)
    a("s_add_u32 s36, s8, %s\ns_addc_u32 s37, s9, 0\ns_mov_b32 s38, 0x20000\ns_mov_b32 s39, 0x20000" % T0)
    srd(sWO, 12, 4096 * 576 * 2); srd(sW2, 20, 4608 * 576 * 2); srd(sWS, 30, 0x40000000)
    a("s_setprio 2")
    a("s_barrier")
    if stamps: a("v_writelane_b32 v%d, s98, 0\nv_writelane_b32 v%d, s99, 1" % (vST, vST))
    for t in range(4):
        a("s_add_u32 %s, %s, %d\ns_mov_b32 m0, %s\ns_nop 0" % (T0, WB, t * 4096, T0))
        for i in range(4):
            a("buffer_load_dwordx4 v%d, %s, %s offen offset:%d%s lds" % (vKD + i, sK, T0, i * 1024, NT))
    stamp(1)
    a("s_setprio 1")
    for t in range(4):
        a("s_movk_i32 %s, %d" % (T1, t * 4096))
        for i in range(4):
            r = vV + (t * 4 + i) * 4
            a("buffer_load_dwordx4 v[%d:%d], v%d, %s, %s offen offset:%d%s" % (r, r + 3, vVO, sV, T1, i * 1024, NT))
    stamp(2)
    a("s_setprio 2")
    a("v_and_b32 v%d, 3, v%d\nv_lshlrev_b32 v%d, 10, v%d" % (vT + 6, vN, vT + 6, vT + 6))
    a("v_lshrrev_b32 v%d, 2, v%d\nv_lshl_add_u32 v%d, v%d, 8, v%d" % (vT + 7, vN, vT + 6, vT + 7, vT + 6))
    a("v_add_u32 v%d, %s, v%d" % (vT + 6, WB, vT + 6))
    for t in range(4):
        a("v_add_u32 v%d, %d, v%d" % (vT + 7, 4 * t, vG))
        a("v_xor_b32 v%d, v%d, v%d" % (vT + 7, vT + 7, vN))
        a("v_lshl_add_u32 v%d, v%d, 4, v%d" % (vKR + t, vT + 7, vT + 6))
    a("v_lshrrev_b32 v%d, 3, v%d\nv_lshlrev_b32 v%d, 8, v%d" % (vT + 6, vN, vT + 6, vT + 6))
    a("v_lshl_add_u32 v%d, v%d, 4, v%d\nv_add_u32 v%d, %d, v%d" % (vQR, vG, vT + 6, vQR, L_Q, vQR))
    a("v_and_b32 v%d, 1, v%d\nv_lshlrev_b32 v%d, 4, v%d" % (vT + 6, vN, vT + 6, vT + 6))
    a("v_mov_b32 v%d, 0xffff\nv_lshlrev_b32 v%d, v%d, v%d" % (vT + 7, vT + 6, vT + 6, vT + 7))
    a("v_bfe_u32 v%d, v%d, 1, 2" % (vT + 7, vN))
    for d in range(4):
        a("v_cmp_eq_u32 vcc, %d, v%d\ns_nop 1\nv_cndmask_b32 v%d, 0, v%d, vcc" % (d, vT + 7, vM + d, vT + 6))
    OPA = vKD
    a("v_lshrrev_b32 v%d, 5, v%d\nv_lshlrev_b32 v%d, 9, v%d" % (vT + 6, vL, vT + 6, vT + 6))
    a("v_lshl_add_u32 v%d, v%d, 5, v%d" % (vT + 6, vN, vT + 6))
    a("v_and_b32 v%d, 1, v%d\nv_lshl_add_u32 v%d, v%d, 4, v%d" % (vT + 7, vG, vT + 6, vT + 7, vT + 6))
    a("s_lshl_b32 %s, %s, 10\ns_add_u32 %s, %s, %d\nv_add_u32 v%d, %s, v%d" % (T0, AW, T0, T0, L_OP, OPA, T0, vT + 6))
    a("s_waitcnt vmcnt(16)")
    stamp(3)
    spin_lds(F_Q, 1)
    stamp(4)
    for t in range(4): a("ds_read_b128 v[%d:%d], v%d offset:%d" % (vQ + 4 * t, vQ + 4 * t + 3, vQR, 64 * t))
    stg = [vKS, vA2]
    def kread(tau):
        for t in range(4):
            r = stg[tau & 1] + 4 * t
            a("ds_read_b128 v[%d:%d], v%d offset:%d" % (r, r + 3, vKR + t, tau * 4096))
    kread(0); kread(1)
    for tau in range(4):
        a("s_waitcnt lgkmcnt(%d)" % (4 if tau < 3 else 0))
        for t in range(4):
            r = stg[tau & 1] + 4 * t
            D = vS + 4 * tau
            a("v_mfma_f32_16x16x32_bf16 v[%d:%d], v[%d:%d], v[%d:%d], %s" % (D, D + 3, r, r + 3, vQ + 4 * t, vQ + 4 * t + 3, "0" if t == 0 else "v[%d:%d]" % (D, D + 3)))
        if tau + 2 < 4: kread(tau + 2)
    mx = vT + 6; tm = vT + 7; ls = vT + 8
    a("s_lshl_b32 %s, %s, 4\ns_add_u32 %s, %s, %d" % (T0, AW, T0, T0, L_ML))
    a("v_max3_f32 v%d, v%d, v%d, v%d" % (mx, vS, vS + 1, vS + 2))
    for j in range(3, 11, 2): a("v_max3_f32 v%d, v%d, v%d, v%d" % (mx, mx, vS + j, vS + j + 1))
    a("s_nop 1")
    for j in range(11, 15, 2): a("v_max3_f32 v%d, v%d, v%d, v%d" % (mx, mx, vS + j, vS + j + 1))
    a("v_max_f32 v%d, v%d, v%d" % (mx, mx, vS + 15))
    for sw in ("v_permlane32_swap_b32", "v_permlane16_swap_b32"):
        a("v_mov_b32 v%d, v%d\ns_nop 1\n%s v%d, v%d\nv_max_f32 v%d, v%d, v%d" % (tm, mx, sw, mx, tm, mx, mx, tm))
    a("v_mul_f32 v%d, %s, v%d" % (tm, CS, mx))
    for j in range(16): a("v_fma_f32 v%d, v%d, %s, -v%d" % (vS + j, vS + j, CS, tm))
    for j in range(16): a("v_exp_f32 v%d, v%d" % (vS + j, vS + j))
    a("s_nop 0")
    a("v_add_f32 v%d, v%d, v%d" % (ls, vS, vS + 1))
    for j in range(2, 16): a("v_add_f32 v%d, v%d, v%d" % (ls, ls, vS + j))
    for j in range(16): a("v_cvt_pk_bf16_f32 v%d, v%d, v%d" % (vS + j, vS + j, vS + j))
    for sw in ("v_permlane32_swap_b32", "v_permlane16_swap_b32"):
        a("v_mov_b32 v%d, v%d\ns_nop 1\n%s v%d, v%d\nv_add_f32 v%d, v%d, v%d" % (tm, ls, sw, ls, tm, ls, ls, tm))
    a("v_mov_b32 v%d, v%d" % (tm, ls))
    a("v_add_u32 v%d, %s, v%d" % (ls, T0, vL))
    a("s_mov_b64 exec, 0x101")
    a("ds_write_b64 v%d, v[%d:%d]" % (ls, mx, tm))
    bump(F_CNT2)
    stamp(5)
    for i in range(16):
        A = vKS + 4 * (i & 7)
        for d in range(4): a("v_and_b32 v%d, v%d, v%d" % (A + d, vS + i, vM + d))
        a("s_waitcnt vmcnt(%d)" % (15 - i))
        a("s_nop 0")
        r = vV + 4 * i
        a("v_mfma_f32_16x16x32_bf16 v[%d:%d], v[%d:%d], v[%d:%d], %s" % (vACC, vACC + 3, A, A + 3, r, r + 3, "0" if i == 0 else "v[%d:%d]" % (vACC, vACC + 3)))
    a("s_nop 7")
    a("ds_write_b128 v%d, v[%d:%d]" % (OPA, vACC, vACC + 3))
    bump(F_CNT3)
    stamp(6)
    a("s_cmp_gt_u32 %s, 4\ns_cbranch_scc1 L_adone" % AW)
    a("s_setprio %d" % wprio)
    a("v_mul_u32_u24 v%d, 1152, v%d" % (vT + 6, vG))
    a("s_mul_i32 %s, %s, %d\ns_mul_i32 %s, %s, %d" % (T1, SIG, 16 * 1152, T2, SIG, 18 * 1152))
    a("v_cmp_gt_u32 vcc, 32, v%d\nv_mov_b32 v%d, 0x40000000" % (vL, vT + 9))
    a("s_cmp_eq_u32 %s, 4\ns_cbranch_scc1 L_wrem" % AW)
    def wpart(full):
        n = 4 if full else 2
        if full:
            a("s_lshl_b32 %s, %s, 8" % (T0, AW))
            a("v_lshl_add_u32 v%d, v%d, 4, v%d\nv_add_u32 v%d, %s, v%d" % (vT + 6, vN, vT + 6, vT + 6, T0, vT + 6))
        else:
            a("v_lshl_add_u32 v%d, v%d, 3, v%d\nv_add_u32 v%d, 1024, v%d" % (vT + 6, vN, vT + 6, vT + 6, vT + 6))
        a("v_cndmask_b32 v%d, v%d, v%d, vcc" % (vT + 7, vT + 9, vT + 6))
        order = [4, 5, 6, 7, 8, 0, 1, 2, 3]
        for i in order:
            srd_, so, k = (sWO, T1, i) if i < 4 else (sW2, T2, i - 4)
            a("s_add_u32 %s, %s, %d" % (T0, so, k * 4608))
            r = vV + 4 * i
            a("buffer_load_dwordx%d v[%d:%d], v%d, %s, %s offen%s" % (n, r, r + n - 1, vT + 7 if i == 8 else vT + 6, srd_, T0, NTW))
        a("s_setprio 2")
        stamp(7)
        if full:
            a("v_lshrrev_b32 v%d, 3, v%d" % (vT + 8, vN))
            a("v_lshrrev_b32 v%d, 5, v%d" % (vT + 9, vL))
        else:
            a("v_bfe_u32 v%d, v%d, 2, 1" % (vT + 8, vN))
            a("v_and_b32 v%d, 1, v%d" % (vT + 9, vG))
            a("v_and_b32 v%d, 1, v%d\nv_lshlrev_b32 v%d, 4, v%d" % (vT + 6, vN, vT + 6, vT + 6))
            a("v_mov_b32 v%d, 0xffff\nv_lshlrev_b32 v%d, v%d, v%d" % (vT + 7, vT + 6, vT + 6, vT + 7))
            a("v_and_b32 v%d, 10, v%d" % (vT + 7, vN))
            for d in range(2):
                a("v_cmp_eq_u32 vcc, %d, v%d\ns_nop 1\nv_cndmask_b32 v%d, 0, v%d, vcc" % (2 * d, vT + 7, vM + d, vT + 6))
        a("v_lshl_add_u32 v%d, v%d, 2, v%d\nv_mul_u32_u24 v%d, 48, v%d\nv_add_u32 v%d, %d, v%d" % (vT + 8, vT + 8, vG, vT + 8, vT + 8, vX, L_VAL, vT + 8))
        a("v_lshlrev_b32 v%d, 4, v%d\nv_add_u32 v%d, %d, v%d" % (vT + 9, vT + 9, vX + 1, L_G, vT + 9))
        a("v_lshrrev_b32 v%d, 2, v%d\nv_lshlrev_b32 v%d, 14, v%d" % (vT + 6, vL, vT + 6, vT + 6))
        a("v_and_b32 v%d, 3, v%d\nv_lshl_add_u32 v%d, v%d, 4, v%d" % (vT + 7, vL, vX + 2, vT + 7, vT + 6))
        a("s_and_b32 %s, %s, 1\ns_lshl_b32 %s, %s, 2\ns_lshr_b32 %s, %s, 1\ns_add_u32 %s, %s, %s\ns_lshl_b32 %s, %s, 5\ns_add_u32 %s, %s, %s\ns_lshl_b32 %s, %s, 6"
          % (T1, SPL, T1, T1, T2, SPL, T1, T1, T2, T1, T1, T1, T1, BH, T1, T1))
        a("s_lshl_b32 %s, %s, 18\ns_add_u32 %s, %s, %s\ns_add_u32 %s, %s, 0x%x" % (T0, AW, T0, T0, T1, T0, T0, WS_FIN))
        spin_lds(F_H, 3)
        VA = vS
        a("ds_read_b128 v[%d:%d], v%d offset:16" % (VA + 4, VA + 7, vX))
        a("ds_read_b32 v%d, v%d offset:32" % (VA + 8, vX))
        a("ds_read_b128 v[%d:%d], v%d" % (vQ, vQ + 3, vX + 1))
        a("s_waitcnt lgkmcnt(0)")
        DA, DF = vACC, vQ + 4
        mf = "v_mfma_f32_16x16x32_bf16" if full else "v_mfma_f32_16x16x16_bf16"
        def mm(k, i):
            A = vKS + 4 * (k & 7)
            for d in range(n): a("v_and_b32 v%d, v%d, v%d" % (A + d, VA + i, vM + d))
            a("s_waitcnt vmcnt(%d)" % (8 - k))
            a("s_nop 0")
            r = vV + 4 * i
            D = DA if i < 4 else DF
            a("%s v[%d:%d], v[%d:%d], v[%d:%d], %s" % (mf, D, D + 3, A, A + n - 1, r, r + n - 1, "0" if i in (0, 4) else "v[%d:%d]" % (D, D + 3)))
        for k in range(5): mm(k, order[k])
        a("s_mov_b32 %s, 0x07060500\ns_mov_b32 %s, 0x07060501\ns_mov_b32 %s, 0x07060502\ns_mov_b32 %s, 0x07060503" % (T1, T2, T4, T5))
        stamp(8)
        spin_lds(F_O, 1, sleep=False)
        a("ds_read_b128 v[%d:%d], v%d" % (VA, VA + 3, vX))
        for r in range(4): a("v_mul_f32 v%d, v%d, v%d" % (DF + r, DF + r, vQ + 1))
        stamp(9)
        a("s_waitcnt lgkmcnt(0)")
        for k in range(5, 9): mm(k, order[k])
        a("s_nop 7")
        for r in range(4): a("v_fmac_f32 v%d, v%d, v%d" % (DF + r, DA + r, vQ))
        for r, sel in enumerate((T1, T2, T4, T5)):
            a("v_perm_b32 v%d, v%d, v%d, %s" % (DF + r, DF + r, vQ + 2, sel))
        if not full: a("s_mov_b32 exec_lo, -1\ns_mov_b32 exec_hi, 0")
        a("buffer_store_dwordx4 v[%d:%d], v%d, %s, %s offen sc1" % (DF, DF + 3, vX + 2, sWS, T0))
        bump(F_CNT4)
        stamp(10)
        a("s_branch L_adone")
    wpart(True)
    a.label("L_wrem")
    wpart(False)

    a.label("L_adone")
    if stamps:
        stamp(15)
        if dbgst:
            a("s_cmp_lg_u32 s3, 0\ns_cbranch_scc1 L_end")
            a("s_mov_b32 s64, s28\ns_mov_b32 s65, s29\ns_mov_b32 s66, 256\ns_mov_b32 s67, 0x20000")
            a("v_not_b32 v%d, v%d\nv_cmp_eq_u32 vcc, 0, v%d\ns_nop 1\nv_cndmask_b32 v%d, v%d, v%d, vcc" % (vT + 1, vST, vL, vST, vST, vT + 1))
            a("v_lshlrev_b32 v%d, 1, v%d" % (vT, vL))
            a("s_mov_b32 exec_lo, 0x55555555\ns_mov_b32 exec_hi, 0")
            a("buffer_atomic_umax v%d, v%d, s[64:67], 0 offen" % (vST, vT))
            a("s_endpgm")
        a("s_mov_b32 %s, 9" % T0)
        for wv, ro in ((0, 0), (1, 1), (4, 2), (11, 3)):
            a("s_cmp_eq_u32 s3, %d\ns_cselect_b32 %s, %d, %s" % (wv, T0, ro, T0))
        a("s_cmp_eq_u32 %s, 9\ns_cbranch_scc1 L_end" % T0)
        a("s_lshl_b32 %s, s2, 9\ns_lshl_b32 %s, %s, 7\ns_add_u32 %s, %s, %s\ns_add_u32 %s, %s, 0x%x" % (T1, T0, T0, T0, T0, T1, T0, T0, WS_STAMP))
        a("v_lshlrev_b32 v%d, 2, v%d" % (vT, vL))
        a("s_mov_b32 exec_lo, -1\ns_mov_b32 exec_hi, 0")
        a("buffer_store_dword v%d, v%d, %s, %s offen" % (vST, vT, sWS, T0))
    a.label("L_end")
    a("s_endpgm")
    return wrap(a.text(), 256, 768, LDS_BYTES, 168)

if __name__ == "__main__":
    out = "scratch/"
    open(out + "k2.s", "w").write(gen())
    open(out + "k2_st.s", "w").write(gen(stamps=True))
    print(LDS_BYTES)
```
